```python
import torch

def _softmax(x, axis=-1):
    return torch.softmax(x, dim=axis)
def _gelu(x):
    return torch.nn.functional.gelu(x, approximate="tanh")
def _silu(x):
    return torch.nn.functional.silu(x)
def _sigmoid(x):
    return torch.sigmoid(x)
def _layernorm(x, axis=-1, eps=1e-5):
    m = x.mean(dim=axis, keepdim=True)
    v = x.var(dim=axis, keepdim=True, unbiased=False)
    return (x - m) / torch.sqrt(v + eps)
def _scatter_add(tgt, idx, src, axis=0):
    return tgt.clone().index_add_(axis, idx, src)
def _segment_sum(src, seg, n):
    out = torch.zeros((n,) + src.shape[1:], dtype=src.dtype)
    return out.index_add_(0, seg, src)
def _pad(x, pw):
    flat = tuple(v for pair in reversed(pw) for v in pair)
    return torch.nn.functional.pad(x, flat)

kernel_name = 'sequential_preLN__mha_block__mixer_channel_mlp__prompt'

def setup_inputs():

    _w = (lambda a: (lambda t: t.to(torch.bfloat16) if t.is_floating_point() else t)(torch.as_tensor(a)))
    def _A_setup():
        B, S, D, H = 1, 2048, 640, 32
        return {
            "x": _w((lambda *s: torch.randn(*s, dtype=torch.bfloat16) * 0.05)(B, S, D)),
            "wqkv": _w((lambda *s: torch.randn(*s, dtype=torch.bfloat16) * 0.05)(D, 3 * D)),
            "wo": _w((lambda *s: torch.randn(*s, dtype=torch.bfloat16) * 0.05)(D, D)),
        }
    _A_in = _A_setup()

    def _B_setup():
        B, S, D, F = 1, 2048, 640, 1728
        return {
            "x": _w((lambda *s: torch.randn(*s, dtype=torch.bfloat16) * 0.05)(B, S, D)),
            "w1": _w((lambda *s: torch.randn(*s, dtype=torch.bfloat16) * 3.2)(D, F) * (D ** -0.5)),
            "b1": _w((lambda *s: torch.randn(*s, dtype=torch.bfloat16) * 1.6)(F)),
            "w2": _w((lambda *s: torch.randn(*s, dtype=torch.bfloat16) * 0.2)(F, D) * (F ** -0.5)),
            "b2": _w((lambda *s: torch.randn(*s, dtype=torch.bfloat16) * 0.4)(D)),
        }
    _B_in = _B_setup()

    return {
        "A_x": _A_in["x"],
        "A_wqkv": _A_in["wqkv"],
        "A_wo": _A_in["wo"],
        "B_x": _B_in["x"],
        "B_w1": _B_in["w1"],
        "B_b1": _B_in["b1"],
        "B_w2": _B_in["w2"],
        "B_b2": _B_in["b2"],
    }

def reference(A_x, A_wqkv, A_wo, B_x, B_w1, B_b1, B_w2, B_b2):
    def _A_ref(x, wqkv, wo):
        B, S, D = x.shape
        H = 32
        Dh = D // H
        qkv = (lambda x, *d: x.permute(*d))((x @ wqkv).reshape(B, S, 3, H, Dh), 2, 0, 3, 1, 4)
        q, k, v = qkv[0], qkv[1], qkv[2]
        scores = torch.einsum("bhqd,bhkd->bhqk", q, k) * (Dh ** -0.5)
        p = _softmax(scores, axis=-1)
        o = torch.einsum("bhqk,bhkd->bhqd", p, v)
        return (lambda x, *d: x.permute(*d))(o, 0, 2, 1, 3).reshape(B, S, D) @ wo

    def _B_ref(x, w1, b1, w2, b2):
        y = _layernorm(x, axis=-1)
        h = _gelu(torch.einsum("bsd,df->bsf", y, w1) + b1)
        return torch.einsum("bsf,fd->bsd", h, w2) + b2

    x = A_x
    h = x + _A_ref(_layernorm(x, axis=-1), A_wqkv, A_wo)
    h2 = h + _B_ref(_layernorm(h, axis=-1), B_w1, B_b1, B_w2, B_b2)
    return h2
```

```python
import re, sys

REG_RE = re.compile(r'^(-|\|)?(abs\()?([vsa])(\d+|\[(\d+):(\d+)\])\)?\|?$')

def parse_reg(tok):
    t = tok.strip()
    if t in ('vcc',): return [('s', 106), ('s', 107)]
    if t == 'vcc_lo': return [('s', 106)]
    if t == 'vcc_hi': return [('s', 107)]
    if t == 'exec': return [('s', 126), ('s', 127)]
    if t == 'exec_lo': return [('s', 126)]
    if t == 'exec_hi': return [('s', 127)]
    if t == 'm0': return [('s', 124)]
    m = REG_RE.match(t)
    if not m: return []
    f = m.group(3)
    if m.group(5) is not None:
        return [(f, i) for i in range(int(m.group(5)), int(m.group(6)) + 1)]
    return [(f, int(m.group(4)))]

TRANS = ('v_exp_f32', 'v_log_f32', 'v_rcp_f32', 'v_rsq_f32', 'v_sqrt_f32', 'v_sin_f32', 'v_cos_f32',
         'v_exp_f16', 'v_rcp_f16', 'v_rcp_iflag_f32')
VCC = [('s', 106), ('s', 107)]
EXEC = [('s', 126), ('s', 127)]
M0 = [('s', 124)]

def mfma_passes(mn):
    if '32x32x16' in mn or '32x32x8' in mn: return 8
    if '16x16x32' in mn or '16x16x16' in mn: return 4
    if '32x32x4_2b' in mn: return 16
    if '16x16x4_4b' in mn: return 8
    if '4x4x4_16b' in mn: return 2
    raise ValueError('unknown mfma ' + mn)

class Ins:
    __slots__ = ('text', 'mn', 'ops', 'mods', 'kind', 'dst', 'src', 'a', 'b', 'c', 'passes', 'label', 'target',
                 'nop', 'comment', 'vm', 'lgkm', 'isdpp', 'issdwa', 'wide_store_data', 'addr_s', 'lds_dma', 'auto')
    def __init__(self, text):
        self.text = text
        self.auto = False
        self.label = None; self.target = None
        self.dst = []; self.src = []; self.a = []; self.b = []; self.c = []
        self.passes = 0; self.nop = 0; self.vm = None; self.lgkm = None
        self.isdpp = False; self.issdwa = False; self.wide_store_data = []; self.addr_s = []; self.lds_dma = False
        t = text.split(';')[0].strip()
        if t.endswith(':'):
            self.kind = 'label'; self.label = t[:-1]; self.mn = ''; return
        if t.startswith('.') or t == '':
            self.kind = 'dir'; self.mn = ''; return
        parts = t.split(None, 1)
        mn = parts[0]; self.mn = mn
        rest = parts[1] if len(parts) > 1 else ''
        ops = []; cur = ''; depth = 0
        for ch in rest:
            if ch in '[(': depth += 1
            if ch in '])': depth -= 1
            if ch == ',' and depth == 0:
                ops.append(cur.strip()); cur = ''
            else:
                cur += ch
        if cur.strip(): ops.append(cur.strip())
        mods = []
        if ops:
            last = ops[-1]
            toks = []; cur = ''; depth = 0
            for ch in last:
                if ch in '[(': depth += 1
                if ch in '])': depth -= 1
                if ch == ' ' and depth == 0:
                    if cur: toks.append(cur); cur = ''
                else:
                    cur += ch
            if cur: toks.append(cur)
            ops[-1] = toks[0]; mods = toks[1:]
        self.ops = ops; self.mods = mods
        R = [parse_reg(o) for o in ops]
        base = mn.replace('_e32', '').replace('_e64', '')
        if mn == 's_nop':
            self.kind = 'nop'; self.nop = int(ops[0], 0) + 1; return
        if mn == 's_waitcnt':
            self.kind = 'wait'
            full = rest
            m = re.search(r'vmcnt\((\d+)\)', full);  self.vm = int(m.group(1)) if m else None
            m = re.search(r'lgkmcnt\((\d+)\)', full); self.lgkm = int(m.group(1)) if m else None
            return
        if mn in ('s_branch',) or mn.startswith('s_cbranch'):
            self.kind = 'branch'; self.target = ops[0]
            if 'vcc' in mn: self.src = VCC
            if 'exec' in mn: self.src = EXEC
            return
        if mn in ('s_endpgm', 's_barrier', 's_setprio', 's_sleep', 's_sethalt'):
            self.kind = 'salu0'; return
        if mn.startswith('s_load') or mn.startswith('s_buffer_load') or mn in ('s_memtime', 's_memrealtime'):
            self.kind = 'smem'; self.dst = R[0]
            for r in R[1:]: self.src += r
            return
        if mn.startswith('s_atomic'):
            self.kind = 'smem'; self.dst = R[0] if 'glc' in mods else []
            for r in R: self.src += r
            return
        if mn.startswith('s_'):
            self.kind = 'salu'
            if mn.startswith('s_cmp') or mn.startswith('s_bitcmp'):
                for r in R: self.src += r
            else:
                self.dst = list(R[0])
                for r in R[1:]: self.src += r
                if 'saveexec' in mn:
                    self.dst += EXEC; self.src += EXEC
                if mn in ('s_addk_i32', 's_mulk_i32'): self.src += R[0]
            return
        if mn.startswith('v_mfma'):
            self.kind = 'mfma'; self.passes = mfma_passes(mn)
            self.dst = R[0]; self.a = R[1]; self.b = R[2]; self.c = R[3]
            self.src = self.a + self.b + self.c
            return
        if mn.startswith('v_'):
            self.kind = 'valu'
            self.isdpp = mn.endswith('_dpp') or any(m.startswith(('quad_perm', 'row_', 'wave_')) for m in mods)
            self.issdwa = mn.endswith('_sdwa') or any(m.startswith('op_sel') for m in mods)
            if base in TRANS: self.kind = 'trans'
            if base.startswith('v_cmpx'):
                self.dst = R[0] + EXEC
                for r in R[1:]: self.src += r
            elif base.startswith('v_cmp'):
                self.dst = R[0]
                for r in R[1:]: self.src += r
            elif base.startswith('v_permlane') and 'swap' in base:
                self.dst = R[0] + R[1]; self.src = R[0] + R[1]
            elif base.startswith(('v_add_co', 'v_sub_co', 'v_subrev_co', 'v_addc_co', 'v_subb_co', 'v_mad_u64', 'v_div_scale')):
                self.dst = R[0] + R[1]
                for r in R[2:]: self.src += r
            else:
                self.dst = list(R[0])
                for r in R[1:]: self.src += r
                if base.startswith(('v_fmac', 'v_dot2c', 'v_pk_fmac', 'v_mac', 'v_writelane')) or \
                   any('UNUSED_PRESERVE' in m for m in mods) or self.isdpp:
                    self.src += R[0]
                if base.startswith('v_cndmask') and len(ops) == 3: self.src += VCC
                if base.startswith('v_div_fmas'): self.src += VCC
            return
        if mn.startswith('ds_'):
            self.kind = 'ds'
            if mn.startswith(('ds_read', 'ds_bpermute', 'ds_permute', 'ds_swizzle')) or '_rtn' in mn:
                self.dst = R[0]
                for r in R[1:]: self.src += r
            else:
                for r in R: self.src += r
            return
        if mn.startswith(('buffer_', 'global_', 'flat_')):
            self.kind = 'vmem'
            islds = ('lds' in mods) or ('_lds_' in mn)
            if mn.startswith(('buffer_wbl2', 'buffer_inv')):
                return
            if islds:
                self.lds_dma = True
                for r in R: self.src += r
                self.src += M0
            elif 'load' in mn:
                self.dst = R[0]
                for r in R[1:]: self.src += r
            elif 'atomic' in mn:
                for r in R: self.src += r
                if 'sc0' in mods:
                    self.dst = R[0] if mn.startswith('buffer') else R[0]
            else:
                for r in R: self.src += r
                if 'x3' in mn or 'x4' in mn:
                    self.wide_store_data = R[0] if mn.startswith('buffer') else R[1]
            self.addr_s = [r for r in self.src if r[0] == 's']
            return
        raise ValueError('unknown instruction: ' + text)

    @property
    def is_valu(self): return self.kind in ('valu', 'trans')
    @property
    def states(self):
        if self.kind in ('label', 'dir'): return 0
        if self.kind == 'nop': return self.nop
        return 1

def inter(a, b):
    sb = set(b)
    return any(x in sb for x in a)

MF_D_VALU = {2: 5, 4: 8, 8: 12, 16: 20}
MF_D_AB = {2: 5, 4: 8, 8: 12, 16: 20}
MF_D_COVL = {2: 4, 4: 6, 8: 10, 16: 18}
MF_C_WAR = {2: 1, 4: 3, 8: 7, 16: 15}

def required(p, c):
    need = 0
    vdst = [r for r in p.dst if r[0] in 'va']
    sdst = [r for r in p.dst if r[0] == 's']
    if p.is_valu:
        if c.kind == 'mfma' and inter(vdst, c.src): need = max(need, 2)
        if c.kind == 'mfma' and inter(sdst, EXEC): need = max(need, 4)
        if p.kind == 'trans' and c.kind == 'valu' and inter(vdst, c.src + c.dst): need = max(need, 1)
        if p.kind == 'trans' and c.kind in ('vmem', 'ds') and inter(vdst, c.src): need = max(need, 1)
        if c.is_valu and c.isdpp and inter(vdst, c.src): need = max(need, 2)
        if c.is_valu and c.isdpp and inter(sdst, EXEC): need = max(need, 5)
        if c.mn.startswith(('v_readlane', 'v_readfirstlane')) and inter(vdst, c.src): need = max(need, 1)
        if c.mn.startswith(('v_readlane', 'v_readfirstlane', 'v_writelane')) and inter(sdst, EXEC): need = max(need, 4)
        if c.mn.startswith(('v_readlane', 'v_writelane')) and inter(sdst, c.src): need = max(need, 4)
        if c.mn.startswith('v_permlane') and inter(vdst, c.src): need = max(need, 2)
        if c.mn.startswith('v_permlane') and inter(sdst, EXEC): need = max(need, 4)
        if c.is_valu and sdst and inter(sdst, c.src): need = max(need, 2)
        if c.mn.startswith('v_div_fmas') and inter(sdst, VCC): need = max(need, 4)
        if c.kind == 'vmem' and inter(sdst, c.src): need = max(need, 5)
        if c.kind in ('salu', 'smem', 'branch') and inter(sdst, c.src): need = max(need, 1)
        if c.kind == 'branch' and inter(sdst, c.src): need = max(need, 5)
        if p.issdwa and c.is_valu and inter(vdst, c.src + c.dst): need = max(need, 1)
        if p.mn.startswith('v_dot') and (c.is_valu or c.kind in ('mfma', 'vmem', 'ds')) and inter(vdst, c.src + c.dst):
            if not (c.mn == p.mn and not inter(vdst, [r for r in c.src if r not in c.dst])):
                need = max(need, 3)
    if p.kind == 'salu':
        if inter(p.dst, M0) and (c.lds_dma or 'addtid' in c.mn): need = max(need, 1)
    if p.kind == 'mfma':
        if c.kind == 'mfma':
            if inter(p.dst, c.a + c.b): need = max(need, MF_D_AB[p.passes])
            if inter(p.dst, c.c):
                if p.dst == c.c and p.passes == c.passes:
                    need = max(need, 2 if p.passes == 2 else 0)
                else:
                    need = max(need, MF_D_COVL[p.passes])
            elif inter(p.dst, c.dst):
                need = max(need, MF_D_COVL[p.passes])
        elif c.is_valu or c.kind in ('vmem', 'ds'):
            if inter(p.dst, c.src + c.dst): need = max(need, MF_D_VALU[p.passes])
            if c.is_valu and inter(p.c, c.dst): need = max(need, MF_C_WAR[p.passes])
            if c.kind in ('vmem', 'ds') and inter(p.c, c.dst): need = max(need, MF_C_WAR[p.passes])
    if p.wide_store_data:
        if inter(p.wide_store_data, c.dst): need = max(need, 2)
    return need

class Prog:
    def __init__(self):
        self.ins = []
    def __call__(self, text):
        for line in text.split('\n'):
            if line.strip() == '' : continue
            self.ins.append(Ins(line.strip()))
    def label(self, name): self(name + ':')

    def _preds(self):
        ins = self.ins
        lab = {i.label: k for k, i in enumerate(ins) if i.kind == 'label'}
        preds = [[] for _ in ins]
        for k, i in enumerate(ins):
            if k + 1 < len(ins) and not (i.mn == 's_branch' or i.mn == 's_endpgm'):
                preds[k + 1].append(k)
            if i.kind == 'branch':
                preds[lab[i.target]].append(k)
        return preds

    def fix_hazards(self, verbose=False):
        total = 0
        changed = True
        while changed:
            changed = False
            preds = self._preds()
            ins = self.ins
            for k, c in enumerate(ins):
                if c.kind in ('label', 'dir', 'nop', 'wait', 'salu0'): continue
                need = 0; why = None
                stack = [(p, 0) for p in preds[k]]
                seen = {}
                while stack:
                    j, dist = stack.pop()
                    if j in seen and seen[j] <= dist: continue
                    seen[j] = dist
                    p = ins[j]
                    if p.kind not in ('label', 'dir', 'nop', 'wait', 'salu0', 'branch'):
                        r = required(p, c)
                        if r - dist > need:
                            need = r - dist; why = p
                    nd = dist + p.states
                    if nd < 20:
                        for q in preds[j]: stack.append((q, nd))
                if need > 0:
                    if verbose:
                        print(f"  nop {need}: [{why.text}] -> [{c.text}]", file=sys.stderr)
                    n = need
                    new = []
                    while n > 0:
                        m = min(n, 16)
                        x = Ins(f's_nop {m-1}'); x.auto = True
                        new.append(x); n -= m
                    self.ins[k:k] = new
                    total += need
                    changed = True
                    break
        return total

    def check_waits(self, entry=0, maxpaths=64):
        ins = self.ins
        lab = {i.label: k for k, i in enumerate(ins) if i.kind == 'label'}
        errors = set()
        work = [(entry, (), (), {})]
        seen = set()
        steps = 0
        while work:
            pc, vm, lg, cnt = work.pop()
            vm = list(vm); lg = list(lg); cnt = dict(cnt)
            while pc < len(ins):
                steps += 1
                if steps > 5000000:
                    print("check_waits: step limit", file=sys.stderr); return errors
                i = ins[pc]
                if i.kind == 'wait':
                    if i.vm is not None:
                        while len(vm) > i.vm: vm.pop(0)
                    if i.lgkm is not None:
                        if any(t == 's' for t, _ in lg):
                            if i.lgkm == 0: lg = []
                        else:
                            while len(lg) > i.lgkm: lg.pop(0)
                elif i.kind not in ('label', 'dir', 'nop'):
                    touched = set(i.src) | set(i.dst)
                    for q in vm:
                        if touched & set(q):
                            if not (i.kind == 'vmem' and not (set(i.src) & set(q))):
                                errors.add((pc, i.text, 'vmcnt'))
                    for t, q in lg:
                        if touched & set(q):
                            if not (i.kind == 'ds' and t == 'd' and not (set(i.src) & set(q))):
                                errors.add((pc, i.text, 'lgkmcnt'))
                    if i.kind == 'vmem' and not i.mn.startswith(('buffer_wbl2', 'buffer_inv')):
                        vm.append(tuple(i.dst))
                        if len(vm) > 63: vm.pop(0)
                    elif i.kind == 'ds':
                        lg.append(('d', tuple(i.dst)))
                        if len(lg) > 15: lg.pop(0)
                    elif i.kind == 'smem':
                        lg.append(('s', tuple(i.dst)))
                if i.mn == 's_endpgm': break
                if i.kind == 'branch':
                    t = lab[i.target]
                    if i.mn == 's_branch':
                        c = cnt.get(pc, 0)
                        if t <= pc and c >= 2: break
                        cnt[pc] = c + 1
                        pc = t; continue
                    c = cnt.get(pc, 0)
                    if c < 2:
                        c2 = dict(cnt); c2[pc] = c + 1
                        key = (t, tuple(vm), tuple(lg), tuple(sorted(c2.items())))
                        if key not in seen:
                            seen.add(key)
                            work.append((t, tuple(vm), tuple(lg), c2))
                pc += 1
        return errors

    def text(self):
        out = []
        for i in self.ins:
            if i.kind == 'label': out.append(i.text)
            elif i.kind == 'dir': out.append(i.text)
            else: out.append('    ' + i.text + ('   ; auto' if i.auto else ''))
        return '\n'.join(out) + '\n'

    def max_regs(self):
        mv = ms = ma = -1
        for i in self.ins:
            for f, n in list(i.dst) + list(i.src):
                if f == 'v': mv = max(mv, n)
                elif f == 'a': ma = max(ma, n)
                elif f == 's' and n < 102: ms = max(ms, n)
        return mv + 1, ms + 1, ma + 1

def vr(base, n=1):
    return f'v{base}' if n == 1 else f'v[{base}:{base+n-1}]'
def sr(base, n=1):
    return f's{base}' if n == 1 else f's[{base}:{base+n-1}]'
def ar(base, n=1):
    return f'a{base}' if n == 1 else f'a[{base}:{base+n-1}]'

class Alloc:
    def __init__(self, start, limit):
        self.cur = start; self.limit = limit
    def get(self, n=1, align=1):
        if n >= 2: align = max(align, 2)
        c = (self.cur + align - 1) // align * align
        self.cur = c + n
        assert self.cur <= self.limit, f'out of registers {self.cur} > {self.limit}'
        return c

def kernel_text(name, prog, nsgpr=None, force_vgpr=None):
    nv, ns, na = prog.max_regs()
    acc = (nv + 3) // 4 * 4
    acc = max(acc, 4)
    total = acc + na if na > 0 else nv
    if force_vgpr: total = max(total, force_vgpr)
    if na == 0: acc = min(256, max(acc, (total + 3) // 4 * 4)) if total <= 256 else acc
    body = f".globl {name}\n.p2align 8\n.type {name},@function\n{name}:\n" + prog.text()
    desc = f""".amdhsa_kernel {name}
  .amdhsa_next_free_vgpr {total}
  .amdhsa_next_free_sgpr {max(ns, 16) if nsgpr is None else nsgpr}
  .amdhsa_accum_offset {acc}
  .amdhsa_group_segment_fixed_size 0
  .amdhsa_kernarg_size 88
  .amdhsa_user_sgpr_count 2
  .amdhsa_user_sgpr_kernarg_segment_ptr 1
  .amdhsa_system_sgpr_workgroup_id_x 1
  .amdhsa_float_denorm_mode_32 3
.end_amdhsa_kernel
"""
    return body, desc


class Stamps:
    def __init__(self, p, enabled, sbase, kidx, waves_per_wg):
        self.p = p; self.en = enabled; self.sb = sbase; self.n = 0; self.kidx = kidx; self.wpw = waves_per_wg
    def stamp(self, wait=True, at=None):
        if at is not None and self.en:
            r = self.sb + 2 * at
            self.p(f"s_memtime s[{r}:{r+1}]"); self.p("s_waitcnt lgkmcnt(0)"); return
        if not self.en: return
        r = self.sb + 2 * self.n
        self.p(f"s_memtime s[{r}:{r+1}]")
        if wait: self.p("s_waitcnt lgkmcnt(0)")
        self.n += 1
    def rt(self):
        if not self.en: return
        r = self.sb + 2 * self.n
        self.p(f"s_memrealtime s[{r}:{r+1}]")
        self.n += 1
    def flush(self, R, sW, vtmp, dbg_base, stmp):
        if not self.en: return
        p = self.p
        p("s_waitcnt lgkmcnt(0)")
        p("s_mov_b64 exec, 1")
        p(f"s_mul_i32 s{stmp}, s2, {self.wpw}")
        p(f"s_add_u32 s{stmp}, s{stmp}, s{sW}")
        p(f"s_lshl_b32 s{stmp}, s{stmp}, 6")
        p(f"s_add_u32 s{stmp}, s{stmp}, {dbg_base + self.kidx * 4096 * 64}")
        p(f"v_mov_b32 v{vtmp}, 0")
        for i in range(self.n):
            p(f"v_mov_b32 v{vtmp+1}, s{self.sb + 2*i}")
            p(f"buffer_store_dword v{vtmp+1}, v{vtmp}, s[{R}:{R+3}], s{stmp} offen offset:{4*i}")

class Lgkm:
    def __init__(self, p):
        self.p = p; self.q = []
    def issue(self, text, regs):
        self.p(text)
        self.q.append(set(regs))
        if len(self.q) > 15: self.q.pop(0)
    def need(self, regs):
        regs = set(regs)
        last = -1
        for i, r in enumerate(self.q):
            if r & regs: last = i
        if last >= 0:
            n = len(self.q) - 1 - last
            self.p(f"s_waitcnt lgkmcnt({n})")
            self.q = self.q[last + 1:]
    def drain(self):
        if self.q:
            self.p("s_waitcnt lgkmcnt(0)")
        self.q = []

def srd(p, d, ptr, nbytes):
    p(f"s_mov_b32 s{d}, s{ptr}")
    p(f"s_mov_b32 s{d+1}, s{ptr+1}")
    p(f"s_mov_b32 s{d+2}, {nbytes}")
    p(f"s_mov_b32 s{d+3}, 0x00020000")

import struct
def f32(x):
    return "0x%08x" % struct.unpack('<I', struct.pack('<f', x))[0]
```

```python
from asmlib import *
from layout import *

def gen_attn(dbg=False, solo=False, noexec=False, zpad=False):
    p = Prog()
    st = Stamps(p, dbg, 40, 1, 8)
    WS = 4
    R = 8
    sW, sHEAD, sQB, sT, sKV, sM0, sIT, sFLAG, sT2 = 12, 13, 14, 15, 16, 17, 18, 19, 20
    sVM = 22
    sEX = 24
    va = Alloc(1, 256)
    vL = va.get(); vT = va.get(); vT2 = va.get(); vT3 = va.get()
    vAK = va.get(); vAK2 = va.get(); vAV = va.get(); vDMA = va.get()
    vO0 = va.get(); vO1 = va.get(); vO2 = va.get()
    Qa = va.get(4, 4); Qb = va.get(2, 2)
    Ka = va.get(4, 4); Kb = va.get(2, 2)
    V0 = va.get(4, 4); V1 = va.get(4, 4)
    P = va.get(8, 4)
    S = [va.get(16, 4), va.get(16, 4)]
    O = va.get(16, 4); NM = va.get(16, 4)

    p("s_cmp_ge_u32 s2, 256")
    p("s_cbranch_scc1 L_attn_end")
    st.rt(); st.stamp(wait=False)
    p(f"s_load_dwordx2 s[{WS}:{WS+1}], s[0:1], 80")
    p(f"v_and_b32 v{vL}, 63, v0")
    p(f"v_lshrrev_b32 v{vT}, 6, v0")
    p(f"s_and_b32 s{sT}, s2, 7")
    p(f"v_readfirstlane_b32 s{sW}, v{vT}")
    p(f"s_lshr_b32 s{sT2}, s2, 3")
    p(f"s_lshl_b32 s{sHEAD}, s{sT}, 2")
    p(f"s_and_b32 s{sT}, s{sT2}, 3")
    p(f"s_add_u32 s{sHEAD}, s{sHEAD}, s{sT}")
    p(f"s_lshr_b32 s{sQB}, s{sT2}, 2")
    p(f"v_lshlrev_b32 v{vDMA}, 4, v{vL}")
    p(f"v_and_b32 v{vT}, 31, v{vL}")
    p(f"v_lshlrev_b32 v{vT2}, 3, v{vT}")
    p(f"v_mov_b32 v{Qb}, 0")
    p(f"v_mov_b32 v{Qb+1}, 0")
    p(f"s_mul_i32 s{sT}, s{sHEAD}, 81920")
    p(f"s_lshl_b32 s{sT2}, s{sQB}, 3")
    p(f"s_add_u32 s{sT2}, s{sT2}, s{sW}")
    p(f"s_mul_i32 s{sT2}, s{sT2}, 1280")
    p(f"s_add_u32 s{sT}, s{sT}, s{sT2}")
    if WS_Q: p(f"s_add_u32 s{sT}, s{sT}, {WS_Q}")
    p(f"s_mul_i32 s{sKV}, s{sHEAD}, 163840")
    p(f"s_add_u32 s{sKV}, s{sKV}, {WS_KV}")
    p(f"s_mov_b32 s{sVM}, 0x000fffff")
    p(f"s_mov_b32 s{sVM+1}, 0x000fffff")
    p("s_waitcnt lgkmcnt(0)")
    srd(p, R, WS, WS_END)
    p(f"buffer_load_dwordx4 v[{Qa}:{Qa+3}], v{vDMA}, s[{R}:{R+3}], s{sT} offen")
    p("s_mov_b32 exec_hi, 0")
    p(f"buffer_load_dwordx2 v[{Qb}:{Qb+1}], v{vT2}, s[{R}:{R+3}], s{sT} offen offset:1024")
    p(f"s_mov_b64 exec, -1")
    p(f"s_mul_i32 s{sT}, s{sQB}, 20")
    p(f"s_add_u32 s{sT}, s{sT}, s{sW}")
    p(f"s_lshl_b32 s{sM0}, s{sW}, 10")
    for r in range(20):
        p(f"s_cmp_ge_u32 s{sT}, 160")
        p(f"s_cselect_b32 s{sT2}, 160, 0")
        p(f"s_sub_u32 s{sT}, s{sT}, s{sT2}")
        p(f"s_lshl_b32 s{sT2}, s{sT}, 10")
        p(f"s_add_u32 s{sT2}, s{sT2}, s{sKV}")
        p(f"s_add_u32 m0, s{sM0}, {r*8192}")
        p(f"s_add_u32 s{sT}, s{sT}, 8")
        p(f"buffer_load_dwordx4 v{vDMA}, s[{R}:{R+3}], s{sT2} offen lds")
    p(f"v_add_u32 v{vAK2}, 1024, v{vT2}")
    p(f"v_lshrrev_b32 v{vT3}, 5, v{vL}")
    p(f"v_mul_u32_u24 v{vAV}, 320, v{vT3}")
    p(f"v_lshl_add_u32 v{vAV}, v{vT}, 4, v{vAV}")
    p(f"v_add_u32 v{vAV}, 1280, v{vAV}")
    p(f"s_lshl_b32 s{sT}, s{sQB}, 4")
    p(f"s_lshl_b32 s{sT2}, s{sW}, 1")
    p(f"s_add_u32 s{sT}, s{sT}, s{sT2}")
    p(f"s_mul_i32 s{sT}, s{sT}, 20480")
    p(f"s_add_u32 s{sT}, s{sT}, {WS_O}")
    p(f"v_lshrrev_b32 v{vO2}, 4, v{vT}")
    p(f"v_mul_u32_u24 v{vO2}, 20480, v{vO2}")
    p(f"v_and_b32 v{vO0}, 15, v{vL}")
    p(f"v_lshl_add_u32 v{vO2}, v{vO0}, 4, v{vO2}")
    p(f"v_add_u32 v{vO2}, s{sT}, v{vO2}")
    p(f"s_mul_i32 s{sT2}, s{sHEAD}, 5")
    def jpart(dst, jreg, tmp):
        p(f"v_lshrrev_b32 v{tmp}, 3, v{jreg}")
        p(f"v_lshl_add_u32 v{dst}, v{tmp}, 10, v{vO2}")
        p(f"v_and_b32 v{tmp}, 3, v{jreg}")
        p(f"v_lshl_add_u32 v{dst}, v{tmp}, 8, v{dst}")
        p(f"v_bfe_u32 v{tmp}, v{jreg}, 2, 1")
        p(f"v_lshl_add_u32 v{dst}, v{tmp}, 3, v{dst}")
    p(f"v_add_u32 v{vT3}, s{sT2}, v{vT3}")
    jpart(vO0, vT3, vT)
    p(f"v_add_u32 v{vT3}, 2, v{vT3}")
    jpart(vO1, vT3, vT)
    p(f"s_add_u32 s{sT2}, s{sT2}, 4")
    p(f"v_mov_b32 v{vT3}, s{sT2}")
    p(f"v_mov_b32 v{vT2}, v{vO2}")
    p(f"v_lshrrev_b32 v{vT}, 3, v{vT3}")
    p(f"v_lshl_add_u32 v{vT2}, v{vT}, 10, v{vT2}")
    p(f"v_and_b32 v{vT}, 3, v{vT3}")
    p(f"v_lshl_add_u32 v{vT2}, v{vT}, 8, v{vT2}")
    p(f"v_bfe_u32 v{vT}, v{vT3}, 2, 1")
    p(f"v_lshl_add_u32 v{vO2}, v{vT}, 3, v{vT2}")
    for i in range(4):
        p(f"v_mov_b32 v{V0+i}, 0x3f803f80")
        p(f"v_mov_b32 v{V1+i}, 0x3f803f80")
    if zpad:
        p("s_mov_b32 exec_lo, 0xeef00000")
        p("s_mov_b32 exec_hi, 0xeef00000")
        for i in range(4):
            p(f"v_mov_b32 v{V0+i}, 0")
            p(f"v_mov_b32 v{V1+i}, 0")
        p("s_mov_b64 exec, -1")
    p(f"s_mov_b32 s{sFLAG}, 0")
    st.stamp()
    p("s_waitcnt vmcnt(17)")
    p("s_barrier")
    st.stamp()
    if solo:
        p(f"s_cmp_lt_u32 s{sW}, 4")
        p("s_cbranch_scc1 L_attn_go")
        p("s_waitcnt vmcnt(0)")
        p("s_barrier")
        p("s_endpgm")
        p.label("L_attn_go")
    p(f"ds_read_b128 v[{Ka}:{Ka+3}], v{vDMA}")
    p(f"ds_read_b64 v[{Kb}:{Kb+1}], v{vAK2}")
    p("s_waitcnt lgkmcnt(0)")
    p(f"v_mfma_f32_32x32x16_bf16 v[{S[1]}:{S[1]+15}], v[{Ka}:{Ka+3}], v[{Qa}:{Qa+3}], 0")
    p(f"v_mfma_f32_32x32x8_bf16 v[{S[1]}:{S[1]+15}], v[{Kb}:{Kb+1}], v[{Qb}:{Qb+1}], v[{S[1]}:{S[1]+15}]")
    s1 = S[1]
    p(f"v_max3_f32 v{vT}, v{s1}, v{s1+1}, v{s1+2}")
    for i in range(3, 15, 2):
        p(f"v_max3_f32 v{vT}, v{vT}, v{s1+i}, v{s1+i+1}")
    p(f"v_max_f32 v{vT}, v{vT}, v{s1+15}")
    p.label("L_attn_setmax")
    p(f"v_mov_b32 v{vT2}, v{vT}")
    p(f"v_permlane32_swap_b32 v{vT}, v{vT2}")
    p(f"v_max_f32 v{vT}, v{vT}, v{vT2}")
    for i in range(16):
        p(f"v_sub_f32 v{NM+i}, 0, v{vT}")
    for i in range(16):
        p(f"v_mov_b32 v{O+i}, 0")
    for i in range(4, 8):
        p(f"v_mov_b32 v{P+i}, 0")
    p(f"v_mov_b32 v{vAK}, v{vDMA}")
    p(f"v_and_b32 v{vT}, 31, v{vL}")
    p(f"v_lshlrev_b32 v{vAK2}, 3, v{vT}")
    p(f"v_add_u32 v{vAK2}, 1024, v{vAK2}")
    p(f"v_lshrrev_b32 v{vT3}, 5, v{vL}")
    p(f"v_mul_u32_u24 v{vAV}, 320, v{vT3}")
    p(f"v_lshl_add_u32 v{vAV}, v{vT}, 4, v{vAV}")
    p(f"v_add_u32 v{vAV}, 1280, v{vAV}")
    def rdKa(t): p(f"ds_read_b128 v[{Ka}:{Ka+3}], v{vAK} offset:{t*2560}")
    def rdKb(t): p(f"ds_read_b64 v[{Kb}:{Kb+1}], v{vAK2} offset:{t*2560}")
    def rdV(reg, t, half):
        if not noexec: p(f"s_mov_b64 exec, s[{sVM}:{sVM+1}]")
        p(f"ds_read_b128 v[{reg}:{reg+3}], v{vAV} offset:{t*2560 + half*640}")
        if not noexec: p("s_mov_b64 exec, -1")
    def QKa(b): p(f"v_mfma_f32_32x32x16_bf16 v[{S[b]}:{S[b]+15}], v[{Ka}:{Ka+3}], v[{Qa}:{Qa+3}], v[{NM}:{NM+15}]")
    def QKb(b): p(f"v_mfma_f32_32x32x8_bf16 v[{S[b]}:{S[b]+15}], v[{Kb}:{Kb+1}], v[{Qb}:{Qb+1}], v[{S[b]}:{S[b]+15}]")
    def PV(vreg, half): p(f"v_mfma_f32_32x32x16_bf16 v[{O}:{O+15}], v[{vreg}:{vreg+3}], v[{P+4*half}:{P+4*half+3}], v[{O}:{O+15}]")
    rdKa(0); rdKb(0)
    rdV(V1, 0, 0)
    p("s_waitcnt lgkmcnt(0)")
    QKa(0); QKb(0)
    rdKa(1)
    rdV(V1, 0, 0)
    rdKb(1)
    rdV(V0, 0, 0)
    p(f"s_mov_b32 s{sIT}, 0")
    if dbg:
        st.stamp()
        p("s_waitcnt lgkmcnt(0)")
    p(".p2align 6")
    p.label("L_attn_loop")
    for j in range(8):
        c = j & 1; n = c ^ 1; s = S[c]
        E = lambda i: p(f"v_exp_f32 v{s+i}, v{s+i}")
        C = lambda i: p(f"v_cvt_pk_bf16_f32 v{P+i}, v{s+2*i}, v{s+2*i+1}")
        p("s_waitcnt lgkmcnt(3)")
        QKa(n)
        rdKa(j + 2)
        for i in range(0, 5): E(i)
        p("s_waitcnt lgkmcnt(3)")
        PV(V1, 1)
        rdV(V1, j, 1)
        for i in range(5, 8): E(i)
        for i in range(0, 4): C(i)
        p("s_waitcnt lgkmcnt(3)")
        QKb(n)
        rdKb(j + 2)
        for i in range(8, 13): E(i)
        p("s_waitcnt lgkmcnt(3)")
        PV(V0, 0)
        rdV(V0, j + 1, 0)
        for i in range(13, 16): E(i)
        for i in range(4, 8): C(i)
    p(f"v_add_u32 v{vAK}, 20480, v{vAK}")
    p(f"v_add_u32 v{vAK2}, 20480, v{vAK2}")
    p(f"v_add_u32 v{vAV}, 20480, v{vAV}")
    p(f"s_or_b32 s{sT}, s{sIT}, s{sFLAG}")
    p(f"s_cmp_lg_u32 s{sT}, 0")
    p("s_cbranch_scc1 L_attn_nobar")
    p("s_waitcnt vmcnt(0)")
    p("s_barrier")
    p.label("L_attn_nobar")
    p(f"s_add_u32 s{sIT}, s{sIT}, 1")
    p(f"s_cmp_lt_u32 s{sIT}, 8")
    p("s_cbranch_scc1 L_attn_loop")
    p("s_waitcnt lgkmcnt(0)")
    st.stamp()
    PV(V1, 1)
    p(f"v_max3_f32 v{vT}, abs(v{O}), abs(v{O+1}), abs(v{O+2})")
    for i in range(3, 13, 2):
        p(f"v_max3_f32 v{vT}, v{vT}, abs(v{O+i}), abs(v{O+i+1})")
    p(f"v_add_f32 v{vT2}, v{O}, v{O+1}")
    for i in range(2, 13):
        p(f"v_add_f32 v{vT2}, v{vT2}, v{O+i}")
    p(f"v_mov_b32 v{vT3}, 0x7e000000")
    p(f"v_cmp_nlt_f32 vcc, v{vT}, v{vT3}")
    p(f"v_cmp_u_f32 s[{sEX}:{sEX+1}], v{vT2}, v{vT2}")
    p(f"s_or_b64 vcc, vcc, s[{sEX}:{sEX+1}]")
    p(f"s_cmp_lg_u32 s{sFLAG}, 0")
    p("s_cbranch_scc1 L_attn_store")
    p("s_cbranch_vccnz L_attn_slow")
    p.label("L_attn_store")
    p(f"v_rcp_f32 v{vT}, v{O+12}")
    for i in range(12):
        p(f"v_mul_f32 v{O+i}, v{vT}, v{O+i}")
    for i in range(6):
        p(f"v_cvt_pk_bf16_f32 v{P+i}, v{O+2*i}, v{O+2*i+1}")
    p(f"buffer_store_dwordx2 v[{P}:{P+1}], v{vO0}, s[{R}:{R+3}], 0 offen")
    p(f"buffer_store_dwordx2 v[{P+2}:{P+3}], v{vO1}, s[{R}:{R+3}], 0 offen")
    p("s_mov_b32 exec_hi, 0")
    p(f"buffer_store_dwordx2 v[{P+4}:{P+5}], v{vO2}, s[{R}:{R+3}], 0 offen")
    if dbg:
        p("s_waitcnt vmcnt(0)")
        st.stamp(); st.rt()
        st.flush(R, sW, vT, WS_DBG, sT)
    p.label("L_attn_end")
    p("s_endpgm")
    p.label("L_attn_slow")
    p(f"s_mov_b32 s{sFLAG}, 1")
    p(f"v_mov_b32 v{vAK}, v{vDMA}")
    p(f"v_and_b32 v{vT}, 31, v{vL}")
    p(f"v_lshlrev_b32 v{vAK2}, 3, v{vT}")
    p(f"v_add_u32 v{vAK2}, 1024, v{vAK2}")
    p(f"v_mov_b32 v{vT}, 0xff800000")
    p(f"s_mov_b32 s{sIT}, 0")
    p.label("L_attn_maxloop")
    p(f"ds_read_b128 v[{Ka}:{Ka+3}], v{vAK}")
    p(f"ds_read_b64 v[{Kb}:{Kb+1}], v{vAK2}")
    p("s_waitcnt lgkmcnt(0)")
    p(f"v_mfma_f32_32x32x16_bf16 v[{s1}:{s1+15}], v[{Ka}:{Ka+3}], v[{Qa}:{Qa+3}], 0")
    p(f"v_mfma_f32_32x32x8_bf16 v[{s1}:{s1+15}], v[{Kb}:{Kb+1}], v[{Qb}:{Qb+1}], v[{s1}:{s1+15}]")
    p(f"v_add_u32 v{vAK}, 2560, v{vAK}")
    p(f"v_add_u32 v{vAK2}, 2560, v{vAK2}")
    for i in range(0, 16, 2):
        p(f"v_max3_f32 v{vT}, v{vT}, v{s1+i}, v{s1+i+1}")
    p(f"s_add_u32 s{sIT}, s{sIT}, 1")
    p(f"s_cmp_lt_u32 s{sIT}, 64")
    p("s_cbranch_scc1 L_attn_maxloop")
    p("s_branch L_attn_setmax")
    return p
```

```python
from asmlib import *
from layout import *
import math

def gemm_common(name, kidx, NT, WAVES, KS, wpitch, wslot, wbytes, act_base, dbg, D, NSLOT, mapfn, pre_hook, epilogue, extra_lds=0, rotmul=1):
    p = Prog()
    st = Stamps(p, dbg, 70, kidx, WAVES)
    c = type('C', (), {})()
    c.p = p; c.st = st
    PWT, PWS = 4, 6
    RW, RS = 8, 12
    c.RW, c.RS = RW, RS
    sW, sRB, sCB, sT, sT2, sROT, sAO, sWO, sM0, sAB, sWB, sTOK = range(16, 28)
    c.sW, c.sRB, c.sCB, c.sT, c.sT2, c.sTOK, c.sM0 = sW, sRB, sCB, sT, sT2, sTOK, sM0
    sMASK = 28
    c.sMASK = sMASK
    c.sfree = 30
    NST = KS // 2
    RPW = 64 // WAVES
    CPR = NT * 2
    NCH = RPW * CPR
    NDMA = (NCH + 63) // 64
    LASTN = NCH - 64 * (NDMA - 1)
    SB = 64 * NT * 32
    c.NDMA, c.LASTN, c.SB, c.CPR, c.RPW = NDMA, LASTN, SB, CPR, RPW
    c.lds_extra = NSLOT * SB
    va = Alloc(1, 256 if WAVES == 8 else 512)
    c.va = va
    vL = va.get(); vT = va.get(); vT2 = va.get(); vT3 = va.get(); vG = va.get(); vR16 = va.get(); vL16 = va.get()
    c.vL, c.vT, c.vT2, c.vT3, c.vG, c.vR16, c.vL16 = vL, vT, vT2, vT3, vG, vR16, vL16
    dW = [va.get() for _ in range(NDMA)]
    c.dW = dW
    nrng = (NSLOT * SB + 65535) // 65536
    slots_per_rng = 65536 // SB
    nrng = (NSLOT + slots_per_rng - 1) // slots_per_rng
    aW = [va.get() for _ in range(nrng)]
    NAB = D + 2
    AF = [[va.get(4, 4) for _ in range(2)] for _ in range(NAB)]
    WF = [[va.get(4, 4) for _ in range(NT)] for _ in range(2)]
    ACC = [va.get(4, 4) for _ in range(NT)]
    c.AF, c.WF, c.ACC = AF, WF, ACC

    p("s_cmp_ge_u32 s2, 256")
    p(f"s_cbranch_scc1 L_{name}_end")
    st.rt(); st.stamp(wait=False)
    p(f"s_load_dwordx2 s[{PWT}:{PWT+1}], s[0:1], {wslot*8}")
    p(f"s_load_dwordx2 s[{PWS}:{PWS+1}], s[0:1], 80")
    pre_hook(c, 'sload')
    p(f"v_and_b32 v{vL}, 63, v0")
    p(f"v_lshrrev_b32 v{vT}, 6, v0")
    p(f"v_lshlrev_b32 v{vL16}, 4, v{vL}")
    p(f"v_readfirstlane_b32 s{sW}, v{vT}")
    mapfn(c)
    p(f"s_mov_b32 s{sROT}, s{sT}")
    for _ in range(3):
        p(f"s_cmp_ge_u32 s{sROT}, {NST}")
        p(f"s_cselect_b32 s{sT}, {NST}, 0")
        p(f"s_sub_u32 s{sROT}, s{sROT}, s{sT}")
    p(f"v_lshrrev_b32 v{vG}, 4, v{vL}")
    p(f"v_and_b32 v{vR16}, 15, v{vL}")
    magic = (65536 + CPR - 1) // CPR
    for q in range(NDMA * 64): assert (q * magic) >> 16 == q // CPR
    for i in range(NDMA):
        p(f"v_add_u32 v{vT}, {64*i}, v{vL}")
        p(f"v_mul_u32_u24 v{vT2}, {magic}, v{vT}")
        p(f"v_lshrrev_b32 v{vT2}, 16, v{vT2}")
        p(f"v_mul_u32_u24 v{vT3}, {CPR}, v{vT2}")
        p(f"v_sub_u32 v{vT}, v{vT}, v{vT3}")
        p(f"v_mul_u32_u24 v{vT2}, {wpitch}, v{vT2}")
        p(f"v_lshl_add_u32 v{dW[i]}, v{vT}, 4, v{vT2}")
    lastmask = (1 << LASTN) - 1
    p(f"s_mov_b32 s{sMASK}, {lastmask & 0xffffffff}")
    p(f"s_mov_b32 s{sMASK+1}, {lastmask >> 32}")
    p(f"s_mul_i32 s{sTOK}, s{sRB}, {WAVES}")
    p(f"s_add_u32 s{sTOK}, s{sTOK}, s{sW}")
    p(f"s_mul_i32 s{sAB}, s{sTOK}, {KS*1024}")
    p(f"s_add_u32 s{sAB}, s{sAB}, {act_base}")
    p(f"s_mul_i32 s{sWB}, s{sW}, {RPW*wpitch}")
    p(f"s_mul_i32 s{sT}, s{sCB}, {NT*32}")
    p(f"s_add_u32 s{sWB}, s{sWB}, s{sT}")
    p(f"s_mul_i32 s{sM0}, s{sW}, {NCH*16}")
    p("s_waitcnt lgkmcnt(0)")
    srd(p, RW, PWT, wbytes)
    srd(p, RS, PWS, WS_END)
    log = []
    def vm_ops(s):
        ops = []
        def setup():
            p(f"s_lshl_b32 s{sAO}, s{sROT}, 11")
            p(f"s_add_u32 s{sAO}, s{sAO}, s{sAB}")
            p(f"s_mul_i32 s{sWO}, s{sROT}, {64*wpitch}")
            p(f"s_add_u32 s{sWO}, s{sWO}, s{sWB}")
            p(f"s_add_u32 s{sROT}, s{sROT}, 1")
            p(f"s_cmp_ge_u32 s{sROT}, {NST}")
            p(f"s_cselect_b32 s{sROT}, 0, s{sROT}")
        def mk_dma(i):
            def f():
                if i == 0: setup()
                p(f"s_add_u32 m0, s{sM0}, {(s % NSLOT) * SB + i*1024}")
                if i == NDMA - 1 and LASTN < 64: p(f"s_mov_b64 exec, s[{sMASK}:{sMASK+1}]")
                p(f"buffer_load_dwordx4 v{dW[i]}, s[{RW}:{RW+3}], s{sWO} offen lds")
                if i == NDMA - 1 and LASTN < 64: p("s_mov_b64 exec, -1")
                log.append(s)
            return f
        def mk_act(k):
            def f():
                r = AF[s % NAB][k]
                p(f"buffer_load_dwordx4 v[{r}:{r+3}], v{vL16}, s[{RS}:{RS+3}], s{sAO} offen offset:{k*1024}")
                log.append(s)
            return f
        ops = [mk_dma(0), mk_act(0)] + [mk_dma(i) for i in range(1, NDMA)] + [mk_act(1)]
        return ops
    for s in range(D):
        for f in vm_ops(s): f()
    c.log = log
    pre_hook(c, 'vload')
    st.stamp()
    pitch = NT * 32
    p(f"v_lshrrev_b32 v{vT}, 2, v{vL}")
    p(f"v_mul_u32_u24 v{vT}, {pitch}, v{vT}")
    p(f"v_and_b32 v{vT2}, 3, v{vL}")
    p(f"v_lshl_add_u32 v{aW[0]}, v{vT2}, 3, v{vT}")
    for k in range(1, nrng):
        p(f"v_add_u32 v{aW[k]}, {k*slots_per_rng*SB}, v{aW[0]}")
    pre_hook(c, 'setup')
    R4 = lambda r: [('v', r + i) for i in range(4)]
    L = Lgkm(p)
    def reads(u):
        b = u & 1; s = u >> 1; ks2 = u & 1
        slot = s % NSLOT; rng = slot // slots_per_rng; base = (slot % slots_per_rng) * SB
        out = []
        for nt in range(NT):
            for h in range(2):
                r = WF[b][nt] + 2 * h
                out.append((f"ds_read_b64_tr_b16 v[{r}:{r+1}], v{aW[rng]} offset:{base + ks2*32*pitch + h*16*pitch + nt*32}", [('v', r), ('v', r + 1)]))
        return out
    def vmwait(stage):
        last = max(i for i, s in enumerate(log) if s == stage)
        p(f"s_waitcnt vmcnt({min(63, len(log) - 1 - last)})")
    vmwait(0)
    p("s_barrier")
    st.stamp()
    for t, r in reads(0): L.issue(t, r)
    pend = []
    for u in range(KS):
        b = u & 1; s = u >> 1
        if u & 1 and u < KS - 1:
            L.drain()
            vmwait(s + 1)
            p("s_barrier")
        if (u & 1) == 0 and s + D < NST:
            assert D + 1 <= NSLOT
            pend = vm_ops(s + D)
        nxt = reads(u + 1) if u < KS - 1 else []
        x = AF[s % NAB][u & 1]
        mine = pend[:(len(pend) + 1) // 2] if (u & 1) == 0 else pend
        pend = pend[len(mine):]
        for nt in range(NT):
            w = WF[b][nt]
            L.need(R4(w))
            cc = "0" if u == 0 else f"v[{ACC[nt]}:{ACC[nt]+3}]"
            p(f"v_mfma_f32_16x16x32_bf16 v[{ACC[nt]}:{ACC[nt]+3}], v[{w}:{w+3}], v[{x}:{x+3}], {cc}")
            for tr in nxt[2*nt:2*nt+2]: L.issue(*tr)
            if nt < len(mine): mine[nt]()
    st.stamp()
    epilogue(c)
    if dbg:
        p("s_waitcnt vmcnt(0)")
        st.stamp(); st.rt()
        st.flush(RS, sW, vT, WS_DBG, sT)
    p.label(f"L_{name}_end")
    p("s_endpgm")
    return p, 256, WAVES * 64, NSLOT * SB + extra_lds

def map_32x8(c):
    p = c.p
    p(f"s_and_b32 s{c.sT}, s2, 7")
    p(f"s_lshr_b32 s{c.sT2}, s2, 3")
    p(f"s_lshl_b32 s{c.sRB}, s{c.sT}, 2")
    p(f"s_and_b32 s{c.sCB}, s{c.sT2}, 3")
    p(f"s_add_u32 s{c.sRB}, s{c.sRB}, s{c.sCB}")
    p(f"s_mul_i32 s{c.sT}, s{c.sCB}, {c.rot_a}")
    p(f"s_lshr_b32 s{c.sCB}, s{c.sT2}, 2")
    p(f"s_mul_i32 s{c.sT2}, s{c.sCB}, {c.rot_b}")
    p(f"s_add_u32 s{c.sT}, s{c.sT}, s{c.sT2}")

def reduce_g(p, v, t):
    p(f"v_mov_b32 v{t}, v{v}")
    p(f"v_permlane32_swap_b32 v{v}, v{t}")
    p(f"v_add_f32 v{v}, v{v}, v{t}")
    p(f"v_mov_b32 v{t}, v{v}")
    p(f"v_permlane16_swap_b32 v{v}, v{t}")
    p(f"v_add_f32 v{v}, v{v}, v{t}")

def frag_soff(c, NT, nt, KS, base, sdst, limit=None):
    p = c.p
    p(f"s_mul_i32 s{c.sT}, s{c.sCB}, {NT}")
    if nt: p(f"s_add_u32 s{c.sT}, s{c.sT}, {nt}")
    p(f"s_lshr_b32 s{c.sT2}, s{c.sT}, 1")
    p(f"s_lshl_b32 s{c.sT2}, s{c.sT2}, 10")
    p(f"s_mul_i32 s{sdst}, s{c.sTOK}, {KS*1024}")
    p(f"s_add_u32 s{sdst}, s{sdst}, s{c.sT2}")
    p(f"s_and_b32 s{c.sT2}, s{c.sT}, 1")
    p(f"s_lshl_b32 s{c.sT2}, s{c.sT2}, 3")
    p(f"s_add_u32 s{sdst}, s{sdst}, s{c.sT2}")
    p(f"s_add_u32 s{sdst}, s{sdst}, {base}")
    if limit is not None:
        p(f"s_cmp_ge_u32 s{c.sT}, {limit}")
        p(f"s_cselect_b32 s{sdst}, 0x7ff00000, s{sdst}")

def gen_wo(dbg=False, D=4):
    NT = 5
    def hook(c, when):
        p = c.p
        if when == 'sload':
            c.rot_a, c.rot_b = 3, 1
            c.PX = 32; c.RX = 36; c.sO = [40 + i for i in range(5)]; c.sX = 46; c.sST = 47
            p(f"s_load_dwordx2 s[{c.PX}:{c.PX+1}], s[0:1], 0")
        elif when == 'vload':
            srd(p, c.RX, c.PX, S * D_ * 2)
            p(f"s_mul_i32 s{c.sX}, s{c.sTOK}, {16*1280}")
            p(f"s_mul_i32 s{c.sT}, s{c.sCB}, 160")
            p(f"s_add_u32 s{c.sX}, s{c.sX}, s{c.sT}")
            for i in range(c.NDMA):
                p(f"s_add_u32 m0, s{c.sM0}, {c.lds_extra + i*1024}")
                if i == c.NDMA - 1: p(f"s_mov_b64 exec, s[{c.sMASK}:{c.sMASK+1}]")
                p(f"buffer_load_dwordx4 v{c.dW[i]}, s[{c.RX}:{c.RX+3}], s{c.sX} offen lds")
                c.log.append(-1)
            p("s_mov_b64 exec, -1")
        elif when == 'setup':
            c.aXr = c.va.get()
            p(f"v_mul_u32_u24 v{c.vT}, 160, v{c.vR16}")
            p(f"v_lshl_add_u32 v{c.vT}, v{c.vG}, 3, v{c.vT}")
            p(f"s_add_u32 s{c.sT}, s{c.sM0}, {c.lds_extra}")
            p(f"v_add_u32 v{c.aXr}, s{c.sT}, v{c.vT}")
            for nt in range(NT): frag_soff(c, NT, nt, 20, WS_H, c.sO[nt])
            p(f"s_lshl_b32 s{c.sST}, s{c.sTOK}, 10")
            p(f"s_lshl_b32 s{c.sT}, s{c.sCB}, 3")
            p(f"s_add_u32 s{c.sST}, s{c.sST}, s{c.sT}")
            p(f"s_add_u32 s{c.sST}, s{c.sST}, {WS_ST}")
    def epi(c):
        p = c.p
        X = c.WF[0]
        for nt in range(NT):
            p(f"ds_read_b64 v[{X[nt]}:{X[nt]+1}], v{c.aXr} offset:{nt*32}")
        s1, s2 = c.AF[0][0], c.AF[0][0] + 1
        one = c.AF[0][0] + 2
        p(f"v_mov_b32 v{s1}, 0"); p(f"v_mov_b32 v{s2}, 0"); p(f"v_mov_b32 v{one}, 0x3f803f80")
        for nt in range(NT):
            p(f"s_waitcnt lgkmcnt({NT-1-nt})")
            a = c.ACC[nt]; x = X[nt]
            p(f"v_lshlrev_b32 v{x+2}, 16, v{x}")
            p(f"v_and_b32 v{x}, 0xffff0000, v{x}")
            p(f"v_lshlrev_b32 v{x+3}, 16, v{x+1}")
            p(f"v_and_b32 v{x+1}, 0xffff0000, v{x+1}")
            p(f"v_add_f32 v{a}, v{a}, v{x+2}")
            p(f"v_add_f32 v{a+1}, v{a+1}, v{x}")
            p(f"v_add_f32 v{a+2}, v{a+2}, v{x+3}")
            p(f"v_add_f32 v{a+3}, v{a+3}, v{x+1}")
            p(f"v_cvt_pk_bf16_f32 v{x}, v{a}, v{a+1}")
            p(f"v_cvt_pk_bf16_f32 v{x+1}, v{a+2}, v{a+3}")
            p(f"buffer_store_dwordx2 v[{x}:{x+1}], v{c.vL16}, s[{c.RS}:{c.RS+3}], s{c.sO[nt]} offen")
        for nt in range(NT):
            x = X[nt]
            for i in range(2):
                p(f"v_dot2c_f32_bf16 v{s1}, v{x+i}, v{one}")
                p(f"v_dot2c_f32_bf16 v{s2}, v{x+i}, v{x+i}")
        reduce_g(p, s1, c.vT); reduce_g(p, s2, c.vT2)
        p(f"v_lshlrev_b32 v{c.vT3}, 6, v{c.vR16}")
        p("s_mov_b64 exec, 0xffff")
        p(f"buffer_store_dwordx2 v[{s1}:{s2}], v{c.vT3}, s[{c.RS}:{c.RS+3}], s{c.sST} offen")
        p("s_mov_b64 exec, -1")
    D_ = 640
    return gemm_common("wo", 2, NT, 4, 20, 1280, 2, 640 * 640 * 2, WS_O, dbg, D, 10, map_32x8, hook, epi, extra_lds=10240)

def gen_w1(dbg=False, D=3):
    NT = 7
    def mapfn(c):
        p = c.p
        p(f"s_and_b32 s{c.sT}, s2, 7")
        p(f"s_lshr_b32 s{c.sT2}, s2, 3")
        p(f"s_lshl_b32 s{c.sRB}, s{c.sT}, 1")
        p(f"s_and_b32 s{c.sCB}, s{c.sT2}, 1")
        p(f"s_add_u32 s{c.sRB}, s{c.sRB}, s{c.sCB}")
        p(f"s_mul_i32 s{c.sT}, s{c.sCB}, 5")
        p(f"s_lshr_b32 s{c.sCB}, s{c.sT2}, 1")
        p(f"s_add_u32 s{c.sT}, s{c.sT}, s{c.sCB}")
    def hook(c, when):
        p = c.p
        if when == 'sload':
            c.PB = 32; c.RB1 = 36; c.sO = [40 + i for i in range(7)]; c.sX = 48; c.sY = 49
            p(f"s_load_dwordx2 s[{c.PB}:{c.PB+1}], s[0:1], 40")
        elif when == 'vload':
            srd(p, c.RB1, c.PB, F * 2)
            c.STV = c.va.get(4, 4)
            c.CSV = [c.va.get(4, 4) for _ in range(NT)]
            c.B1V = [c.va.get(2, 2) for _ in range(NT)]
            p(f"s_lshl_b32 s{c.sX}, s{c.sTOK}, 10")
            p(f"s_add_u32 s{c.sX}, s{c.sX}, {WS_ST}")
            p(f"v_lshlrev_b32 v{c.vT}, 6, v{c.vR16}")
            p(f"v_lshl_add_u32 v{c.vT}, v{c.vG}, 4, v{c.vT}")
            p(f"buffer_load_dwordx4 v[{c.STV}:{c.STV+3}], v{c.vT}, s[{c.RS}:{c.RS+3}], s{c.sX} offen")
            c.log.append(-1)
            p(f"v_lshlrev_b32 v{c.vT2}, 4, v{c.vG}")
            p(f"v_lshlrev_b32 v{c.vT3}, 3, v{c.vG}")
            p(f"s_mul_i32 s{c.sX}, s{c.sCB}, {112*4}")
            p(f"s_add_u32 s{c.sX}, s{c.sX}, {WS_CS1}")
            p(f"s_mul_i32 s{c.sY}, s{c.sCB}, {112*2}")
            for nt in range(NT):
                p(f"buffer_load_dwordx4 v[{c.CSV[nt]}:{c.CSV[nt]+3}], v{c.vT2}, s[{c.RS}:{c.RS+3}], s{c.sX} offen offset:{nt*64}")
                p(f"buffer_load_dwordx2 v[{c.B1V[nt]}:{c.B1V[nt]+1}], v{c.vT3}, s[{c.RB1}:{c.RB1+3}], s{c.sY} offen offset:{nt*32}")
                c.log += [-1, -1]
        elif when == 'setup':
            for nt in range(NT): frag_soff(c, NT, nt, 54, WS_G, c.sO[nt], limit=108)
    def epi(c):
        p = c.p
        s = c.STV
        p(f"v_add_f32 v{s}, v{s}, v{s+2}")
        p(f"v_add_f32 v{s+1}, v{s+1}, v{s+3}")
        reduce_g(p, s, c.vT); reduce_g(p, s + 1, c.vT2)
        eps = 1e-5
        p(f"v_mul_f32 v{s}, {f32(1/640)}, v{s}")
        p(f"v_mul_f32 v{s+1}, {f32(1/640)}, v{s+1}")
        p(f"v_fma_f32 v{s+1}, -v{s}, v{s}, v{s+1}")
        p(f"v_max_f32 v{s+1}, 0, v{s+1}")
        p(f"v_add_f32 v{s+2}, {f32(eps)}, v{s+1}")
        p(f"v_rsq_f32 v{s+2}, v{s+2}")
        p(f"v_mul_f32 v{s+3}, v{s+2}, v{s+2}")
        p(f"v_mul_f32 v{s+3}, v{s+3}, v{s+1}")
        p(f"v_add_f32 v{s+3}, {f32(eps)}, v{s+3}")
        p(f"v_rsq_f32 v{s+3}, v{s+3}")
        p(f"v_mul_f32 v{s+1}, v{s+2}, v{s+3}")
        p(f"v_mul_f32 v{s}, v{s}, v{s+1}")
        p(f"v_sub_f32 v{s}, 0, v{s}")
        A, B = s + 1, s
        k0 = -2.0 * math.sqrt(2.0 / math.pi) * math.log2(math.e)
        k1 = k0 * 0.044715
        sK0, sK1 = c.sX, c.sY
        p(f"s_mov_b32 s{sK1}, {f32(k1)}")
        p(f"v_mov_b32 v{s+2}, {f32(k0)}")
        T = c.WF[0]
        for nt in range(NT):
            a = c.ACC[nt]; cs = c.CSV[nt]; b1 = c.B1V[nt]; t = T[nt]
            p(f"v_lshlrev_b32 v{t}, 16, v{b1}")
            p(f"v_and_b32 v{t+1}, 0xffff0000, v{b1}")
            p(f"v_lshlrev_b32 v{t+2}, 16, v{b1+1}")
            p(f"v_and_b32 v{t+3}, 0xffff0000, v{b1+1}")
            for r in range(4): p(f"v_fmac_f32 v{t+r}, v{B}, v{cs+r}")
            for r in range(4): p(f"v_fma_f32 v{a+r}, v{A}, v{a+r}, v{t+r}")
            for r in range(4): p(f"v_mul_f32 v{t+r}, v{a+r}, v{a+r}")
            for r in range(4): p(f"v_fma_f32 v{t+r}, v{t+r}, s{sK1}, v{s+2}")
            for r in range(4): p(f"v_mul_f32 v{t+r}, v{t+r}, v{a+r}")
            for r in range(4): p(f"v_exp_f32 v{t+r}, v{t+r}")
            for r in range(4): p(f"v_add_f32 v{t+r}, 1.0, v{t+r}")
            for r in range(4): p(f"v_rcp_f32 v{t+r}, v{t+r}")
            for r in range(4): p(f"v_mul_f32 v{a+r}, v{a+r}, v{t+r}")
            p(f"v_cvt_pk_bf16_f32 v{t}, v{a}, v{a+1}")
            p(f"v_cvt_pk_bf16_f32 v{t+1}, v{a+2}, v{a+3}")
            p(f"buffer_store_dwordx2 v[{t}:{t+1}], v{c.vL16}, s[{c.RS}:{c.RS+3}], s{c.sO[nt]} offen")
    return gemm_common("w1", 3, NT, 8, 20, 3456, 4, 640 * F * 2, WS_H, dbg, D, 10, mapfn, hook, epi)

def gen_w2(dbg=False, D=4):
    NT = 5
    def hook(c, when):
        p = c.p
        if when == 'sload':
            c.rot_a, c.rot_b = 7, 3
            c.PB = 32; c.RB2 = 36; c.RO = 40; c.sO = [44 + i for i in range(5)]; c.sX = 50; c.sY = 51
            p(f"s_load_dwordx4 s[{c.PB}:{c.PB+3}], s[0:1], 56")
        elif when == 'vload':
            srd(p, c.RB2, c.PB, 640 * 2)
            srd(p, c.RO, c.PB + 2, S * 640 * 2)
            c.HV = [c.va.get(2, 2) for _ in range(NT)]
            c.B2V = [c.va.get(2, 2) for _ in range(NT)]
            for nt in range(NT): frag_soff(c, NT, nt, 20, WS_H, c.sO[nt])
            p(f"v_lshlrev_b32 v{c.vT3}, 3, v{c.vG}")
            p(f"s_mul_i32 s{c.sY}, s{c.sCB}, 160")
            for nt in range(NT):
                p(f"buffer_load_dwordx2 v[{c.HV[nt]}:{c.HV[nt]+1}], v{c.vL16}, s[{c.RS}:{c.RS+3}], s{c.sO[nt]} offen")
                p(f"buffer_load_dwordx2 v[{c.B2V[nt]}:{c.B2V[nt]+1}], v{c.vT3}, s[{c.RB2}:{c.RB2+3}], s{c.sY} offen offset:{nt*32}")
                c.log += [-1, -1]
        elif when == 'setup':
            c.aOw = c.va.get(); c.aOr = c.va.get()
            p(f"v_mul_u32_u24 v{c.vT}, 160, v{c.vR16}")
            p(f"v_lshl_add_u32 v{c.vT}, v{c.vG}, 3, v{c.vT}")
            p(f"s_add_u32 s{c.sT}, s{c.sM0}, {c.lds_extra}")
            p(f"v_add_u32 v{c.aOw}, s{c.sT}, v{c.vT}")
            p(f"v_add_u32 v{c.aOr}, s{c.sT}, v{c.vL16}")
            p(f"s_mul_i32 s{c.sX}, s{c.sTOK}, {16*1280}")
            p(f"s_add_u32 s{c.sX}, s{c.sX}, s{c.sY}")
    def epi(c):
        p = c.p
        T = c.WF[0]
        for nt in range(NT):
            a = c.ACC[nt]; t = T[nt]
            for src in (c.HV[nt], c.B2V[nt]):
                p(f"v_lshlrev_b32 v{t}, 16, v{src}")
                p(f"v_and_b32 v{t+1}, 0xffff0000, v{src}")
                p(f"v_lshlrev_b32 v{t+2}, 16, v{src+1}")
                p(f"v_and_b32 v{t+3}, 0xffff0000, v{src+1}")
                for r in range(4): p(f"v_add_f32 v{a+r}, v{a+r}, v{t+r}")
            p(f"v_cvt_pk_bf16_f32 v{t}, v{a}, v{a+1}")
            p(f"v_cvt_pk_bf16_f32 v{t+1}, v{a+2}, v{a+3}")
            p(f"ds_write_b64 v{c.aOw}, v[{t}:{t+1}] offset:{nt*32}")
        p("s_waitcnt lgkmcnt(0)")
        O = c.WF[1]
        for i in range(3):
            p(f"ds_read_b128 v[{O[i]}:{O[i]+3}], v{c.aOr} offset:{i*1024}")
        for i in range(3):
            p(f"s_waitcnt lgkmcnt({2-i})")
            if i == 2: p(f"s_mov_b64 exec, s[{c.sMASK}:{c.sMASK+1}]")
            p(f"buffer_store_dwordx4 v[{O[i]}:{O[i]+3}], v{c.dW[i]}, s[{c.RO}:{c.RO+3}], s{c.sX} offen")
        p("s_mov_b64 exec, -1")
    return gemm_common("w2", 4, NT, 4, 54, 1280, 6, F * 640 * 2, WS_G, dbg, D, 12, map_32x8, hook, epi, extra_lds=10240 + 1024)
```

```python
from asmlib import *
from layout import *

def gen_qkv(dbg=False):
    p = Prog()
    st = Stamps(p, dbg, 60, 0, 8)
    PX, PW, PWS = 4, 6, 8
    RX, RW, RS = 12, 16, 20
    sW, sRB, sCB, sT, sT2, sROT, sXO, sWO, sM0, sBASE, sHS, sSC, sTQ, sCH = range(24, 38)
    sEX = 38
    sXB, sWB, sT3 = 40, 41, 42
    va = Alloc(1, 256)
    vL = va.get(); vT = va.get(); vT2 = va.get(); vT3 = va.get(); vG = va.get(); vR16 = va.get()
    dX0 = va.get(); dX1 = va.get(); dW0 = va.get(); dW1 = va.get()
    aX = [[[va.get() for _ in range(2)] for _ in range(2)] for _ in range(3)]
    aW = [[va.get() for _ in range(4)] for _ in range(3)]
    oA = [va.get() for _ in range(8)]
    eT = [va.get() for _ in range(2)]
    eC = [va.get() for _ in range(4)]
    ONES = va.get(4, 4)
    XF = [[va.get(4, 4) for _ in range(2)] for _ in range(2)]
    WF = [[va.get(4, 4) for _ in range(4)] for _ in range(2)]
    ACC = [[va.get(4, 4) for _ in range(4)] for _ in range(2)]
    SUM = va.get(4, 4); SQ = va.get(4, 4); CS = va.get(4, 4)

    p("s_cmp_ge_u32 s2, 256")
    p("s_cbranch_scc1 L_qkv_end")
    st.rt(); st.stamp(wait=False)
    p(f"s_load_dwordx4 s[{PX}:{PX+3}], s[0:1], 0")
    p(f"s_load_dwordx2 s[{PWS}:{PWS+1}], s[0:1], 80")
    p(f"v_and_b32 v{vL}, 63, v0")
    p(f"v_lshrrev_b32 v{vT}, 6, v0")
    p(f"s_and_b32 s{sT}, s2, 7")
    p(f"v_readfirstlane_b32 s{sW}, v{vT}")
    p(f"s_lshr_b32 s{sT2}, s2, 3")
    p(f"s_lshr_b32 s{sRB}, s{sT}, 1")
    p(f"s_mov_b32 s{sROT}, s{sRB}")
    p(f"s_lshl_b32 s{sRB}, s{sRB}, 2")
    p(f"s_and_b32 s{sCB}, s{sT2}, 3")
    p(f"s_add_u32 s{sRB}, s{sRB}, s{sCB}")
    p(f"s_mul_i32 s{sCB}, s{sCB}, 3")
    p(f"s_add_u32 s{sROT}, s{sROT}, s{sCB}")
    p(f"s_and_b32 s{sT}, s{sT}, 1")
    p(f"s_mul_i32 s{sCB}, s{sT}, 5")
    p(f"s_add_u32 s{sROT}, s{sROT}, s{sCB}")
    p(f"s_lshr_b32 s{sT2}, s{sT2}, 2")
    p(f"s_add_u32 s{sROT}, s{sROT}, s{sT2}")
    p(f"s_lshl_b32 s{sCB}, s{sT}, 3")
    p(f"s_add_u32 s{sCB}, s{sCB}, s{sT2}")
    p(f"s_cmp_ge_u32 s{sCB}, 15")
    p("s_cbranch_scc1 L_qkv_help")
    for _ in range(2):
        p(f"s_cmp_ge_u32 s{sROT}, 10")
        p(f"s_cselect_b32 s{sT}, 10, 0")
        p(f"s_sub_u32 s{sROT}, s{sROT}, s{sT}")
    p(f"s_lshr_b32 s{sTQ}, s{sW}, 1")
    p(f"s_and_b32 s{sCH}, s{sW}, 1")
    p(f"v_lshrrev_b32 v{vG}, 4, v{vL}")
    p(f"v_and_b32 v{vR16}, 15, v{vL}")
    p(f"v_lshrrev_b32 v{vT}, 3, v{vL}")
    p(f"s_lshl_b32 s{sT}, s{sW}, 4")
    p(f"v_add_u32 v{vT}, s{sT}, v{vT}")
    p(f"v_mul_u32_u24 v{vT}, 1280, v{vT}")
    p(f"v_and_b32 v{vT2}, 7, v{vL}")
    p(f"v_xor_b32 v{vT2}, v{vT2}, v{vG}")
    p(f"v_lshl_add_u32 v{dX0}, v{vT2}, 4, v{vT}")
    p(f"v_xor_b32 v{dX1}, 64, v{dX0}")
    p(f"v_add_u32 v{dX1}, {8*1280}, v{dX1}")
    p(f"s_lshl_b32 s{sT}, s{sW}, 3")
    p(f"v_add_u32 v{vT}, s{sT}, v{vG}")
    p(f"v_mul_u32_u24 v{vT}, 3840, v{vT}")
    p(f"s_lshl_b32 s{sT}, s{sCH}, 2")
    p(f"v_or_b32 v{vT2}, s{sT}, v{vG}")
    p(f"v_lshlrev_b32 v{vT2}, 1, v{vT2}")
    p(f"v_xor_b32 v{vT2}, v{vT2}, v{vR16}")
    p(f"v_lshl_add_u32 v{dW0}, v{vT2}, 4, v{vT}")
    p(f"v_add_u32 v{dW1}, {4*3840}, v{dW0}")
    p(f"s_mul_i32 s{sXB}, s{sRB}, {128*1280}")
    p(f"s_lshl_b32 s{sWB}, s{sCB}, 8")
    p(f"s_lshl_b32 s{sM0}, s{sW}, 11")
    p("s_waitcnt lgkmcnt(0)")
    srd(p, RX, PX, S * D * 2)
    srd(p, RW, PW, D * 1920 * 2)
    srd(p, RS, PWS, WS_END)

    def stage_setup():
        p(f"s_lshl_b32 s{sXO}, s{sROT}, 7")
        p(f"s_add_u32 s{sXO}, s{sXO}, s{sXB}")
        p(f"s_mul_i32 s{sWO}, s{sROT}, {64*3840}")
        p(f"s_add_u32 s{sWO}, s{sWO}, s{sWB}")
        p(f"s_add_u32 s{sROT}, s{sROT}, 1")
        p(f"s_cmp_ge_u32 s{sROT}, 10")
        p(f"s_cselect_b32 s{sROT}, 0, s{sROT}")
    def dma(log, s, i):
        slot = (s % 5) * 32768
        if i == 0: stage_setup()
        off = slot + (0, 1024, 16384, 17408)[i]
        p(f"s_add_u32 m0, s{sM0}, {off}")
        v, R, so = ((dX0, RX, sXO), (dX1, RX, sXO), (dW0, RW, sWO), (dW1, RW, sWO))[i]
        p(f"buffer_load_dwordx4 v{v}, s[{R}:{R+3}], s{so} offen lds")
        log.append(s)
    log0 = []
    for s in (0, 1):
        for i in (0, 2, 1, 3): dma(log0, s, i)
    st.stamp()
    p(f"s_lshl_b32 s{sT}, s{sTQ}, 5")
    p(f"s_lshl_b32 s{sT2}, s{sCH}, 4")
    p(f"s_add_u32 s{sT}, s{sT}, s{sT2}")
    p(f"v_add_u32 v{vT}, s{sT}, v{vR16}")
    p(f"v_lshlrev_b32 v{eT[0]}, 3, v{vT}")
    p(f"v_xor_b32 v{eT[1]}, 128, v{eT[0]}")
    p(f"v_lshlrev_b32 v{vT}, 7, v{vT}")
    p(f"v_lshrrev_b32 v{vT2}, 1, v{vR16}")
    p(f"v_xor_b32 v{vT2}, v{vT2}, v{vG}")
    p(f"v_lshl_add_u32 v{aX[0][0][0]}, v{vT2}, 4, v{vT}")
    p(f"v_xor_b32 v{aX[0][0][1]}, 2048, v{aX[0][0][0]}")
    p(f"v_xor_b32 v{aX[0][1][0]}, 64, v{aX[0][0][0]}")
    p(f"v_xor_b32 v{aX[0][1][1]}, 64, v{aX[0][0][1]}")
    p(f"v_bfe_u32 v{vT}, v{vL}, 2, 2")
    p(f"v_lshl_add_u32 v{vT2}, v{vG}, 3, v{vT}")
    p(f"v_lshlrev_b32 v{vT2}, 8, v{vT2}")
    p(f"v_and_b32 v{vT3}, 3, v{vL}")
    p(f"v_lshl_add_u32 v{vT2}, v{vT3}, 3, v{vT2}")
    p(f"v_and_b32 v{vT3}, 1, v{vG}")
    p(f"v_lshl_or_b32 v{vT}, v{vT3}, 2, v{vT}")
    p(f"s_lshl_b32 s{sT}, s{sCH}, 2")
    p(f"s_or_b32 s{sT3}, s{sT}, s{sTQ}")
    p(f"v_xor_b32 v{vT}, s{sT3}, v{vT}")
    for nt in range(4):
        p(f"v_xor_b32 v{vT3}, {nt}, v{vT}")
        p(f"v_lshl_add_u32 v{aW[0][nt]}, v{vT3}, 5, v{vT2}")
    for k in (1, 2):
        for i in range(2):
            for j in range(2): p(f"v_add_u32 v{aX[k][i][j]}, {65536*k}, v{aX[0][i][j]}")
        for i in range(4): p(f"v_add_u32 v{aW[k][i]}, {65536*k}, v{aW[0][i]}")
    for i in range(4):
        p(f"v_mov_b32 v{ONES+i}, 0x3f803f80")
    p(f"s_lshl_b32 s{sT}, s{sRB}, 2")
    p(f"s_add_u32 s{sT}, s{sT}, s{sTQ}")
    p(f"s_cmp_ge_u32 s{sCB}, 10")
    p("s_cbranch_scc1 L_qkv_vpath")

    R4 = lambda r: [('v', r + i) for i in range(4)]
    PA, PC = 0, 1024
    def mainloop(vtype):
        L = Lgkm(p)
        log = list(log0)
        plan = {0: 2, 1: 3, 2: 4, 3: 5, 4: 6, 5: 7, 7: 8, 9: 9}
        def reads(u):
            b = u & 1; s = u >> 1; ks2 = u & 1
            slot = s % 5; rng = slot // 2; base = (slot % 2) * 32768
            out = []
            def xr(tt): return (f"ds_read_b128 v[{XF[b][tt]}:{XF[b][tt]+3}], v{aX[rng][ks2][tt]} offset:{base}", R4(XF[b][tt]))
            def wr(nt, h):
                r = WF[b][nt] + 2 * h
                return (f"ds_read_b64_tr_b16 v[{r}:{r+1}], v{aW[rng][nt]} offset:{base + 16384 + ks2*8192 + h*1024}", [('v', r), ('v', r + 1)])
            out = [xr(0), wr(0, 0), wr(0, 1), xr(1)]
            for nt in range(1, 4): out += [wr(nt, 0), wr(nt, 1)]
            return out
        def vmwait(stage):
            p(f"s_waitcnt vmcnt({sum(1 for s in log if s > stage)})")
        vmwait(0)
        p("s_barrier")
        if not vtype: st.stamp()
        else: st.stamp(at=3)
        for t, r in reads(0): L.issue(t, r)
        for u in range(20):
            b = u & 1
            first = (u == 0)
            if u & 1 and u < 19:
                L.drain()
                vmwait((u + 1) >> 1)
                p("s_barrier")
            nxt = reads(u + 1) if u < 19 else []
            C = lambda r: "0" if first else f"v[{r}:{r+3}]"
            mf = []
            for nt in range(4):
                for tt in range(2):
                    a, bb = (WF[b][nt], XF[b][tt]) if not vtype else (XF[b][tt], WF[b][nt])
                    mf.append((f"v_mfma_f32_16x16x32_bf16 v[{ACC[tt][nt]}:{ACC[tt][nt]+3}], v[{a}:{a+3}], v[{bb}:{bb+3}], {C(ACC[tt][nt])}",
                               R4(WF[b][nt]) + R4(XF[b][tt])))
            x = XF[b][0]; w = WF[b][0]
            mf.insert(0, (f"v_mfma_f32_16x16x32_bf16 v[{SQ}:{SQ+3}], v[{x}:{x+3}], v[{x}:{x+3}], {C(SQ)}", R4(x)))
            mf.insert(1, (f"v_mfma_f32_16x16x32_bf16 v[{SUM}:{SUM+3}], v[{ONES}:{ONES+3}], v[{x}:{x+3}], {C(SUM)}", R4(x)))
            mf.insert(3, (f"v_mfma_f32_16x16x32_bf16 v[{CS}:{CS+3}], v[{ONES}:{ONES+3}], v[{w}:{w+3}], {C(CS)}", R4(w)))
            dm = [(plan[u], i) for i in (0, 2, 1, 3)] if u in plan else []
            n = len(mf)
            for i, (t, r) in enumerate(mf):
                L.need(r)
                p(t)
                if i < len(nxt): L.issue(*nxt[i])
                if dm and i in (1, 4, 7, 10): dma(log, *dm[(i - 1) // 3])
        if not vtype: st.stamp()
        else: st.stamp(at=4)
        p(f"v_and_b32 v{vT3}, 3, v{vL}")
        p(f"v_cmp_eq_u32 vcc, 1, v{vT3}")
        p(f"v_cndmask_b32 v{vT}, v{SQ}, v{SQ+1}, vcc")
        p(f"v_cmp_eq_u32 vcc, 2, v{vT3}")
        p(f"v_cndmask_b32 v{vT}, v{vT}, v{SQ+2}, vcc")
        p(f"v_cmp_eq_u32 vcc, 3, v{vT3}")
        p(f"v_cndmask_b32 v{vT}, v{vT}, v{SQ+3}, vcc")
        p(f"v_mul_f32 v{vT2}, {f32(1.0/640)}, v{SUM}")
        p(f"v_mul_f32 v{vT}, {f32(1.0/640)}, v{vT}")
        p(f"v_fma_f32 v{vT}, -v{vT2}, v{vT2}, v{vT}")
        p(f"v_max_f32 v{vT}, 0, v{vT}")
        p(f"v_add_f32 v{vT}, {f32(1e-5)}, v{vT}")
        p(f"v_rsq_f32 v{vT}, v{vT}")
        a0 = XF[0][0]
        p(f"v_mul_f32 v{a0}, s{sSC}, v{vT}")
        p(f"v_mul_f32 v{a0+1}, v{a0}, v{vT2}")
        p(f"v_sub_f32 v{a0+1}, 0, v{a0+1}")
        p(f"v_lshrrev_b32 v{vT3}, 2, v{vR16}")
        p(f"v_cmp_eq_u32 vcc, v{vT3}, v{vG}")
        p(f"s_lshl_b32 s{sT}, s{sTQ}, 5")
        p(f"s_lshl_b32 s{sT2}, s{sCH}, 4")
        p(f"s_add_u32 s{sT}, s{sT}, s{sT2}")
        p(f"v_add_u32 v{vT}, s{sT}, v{vR16}")
        p(f"v_lshlrev_b32 v{vT}, 3, v{vT}")
        p(f"s_lshl_b32 s{sT}, s{sT3}, 4")
        p(f"v_add_u32 v{vT2}, s{sT}, v{vR16}")
        p(f"v_lshlrev_b32 v{vT2}, 2, v{vT2}")
        p(f"s_and_saveexec_b64 s[{sEX}:{sEX+1}], vcc")
        p(f"ds_write_b64 v{vT}, v[{a0}:{a0+1}] offset:{PA}")
        p(f"ds_write_b32 v{vT2}, v{CS} offset:{PC}")
        p("s_mov_b64 exec, -1")
        p("s_waitcnt lgkmcnt(0)")
        p("s_barrier")

    p(f"s_cmp_ge_u32 s{sCB}, 5")
    p(f"s_movk_i32 s{sT2}, 1280")
    p(f"s_cselect_b32 s{sT2}, 2560, s{sT2}")
    p(f"s_mul_i32 s{sBASE}, s{sT}, s{sT2}")
    p(f"s_cselect_b32 s{sT2}, {WS_KV}, {WS_Q}")
    p(f"s_add_u32 s{sBASE}, s{sBASE}, s{sT2}")
    p(f"s_cmp_ge_u32 s{sCB}, 5")
    p(f"s_mov_b32 s{sHS}, 81920")
    p(f"s_cselect_b32 s{sHS}, 163840, s{sHS}")
    p(f"s_mov_b32 s{sSC}, {f32(QSCALE)}")
    p(f"s_cselect_b32 s{sSC}, 1.0, s{sSC}")
    p(f"s_cselect_b32 s{sT2}, 5, 0")
    p(f"s_sub_u32 s{sT2}, s{sCB}, s{sT2}")
    p(f"s_lshl_b32 s{sT2}, s{sT2}, 5")
    p(f"s_lshl_b32 s{sT}, s{sCH}, 4")
    p(f"v_add_u32 v{E0 if False else SUM}, s{sT}, v{vR16}")
    p(f"v_xor_b32 v{SUM+1}, 16, v{SUM}")
    for nt in range(4):
        p(f"s_xor_b32 s{sT}, s{sT3}, {nt}")
        p(f"v_lshl_add_u32 v{eC[nt]}, s{sT}, 2, v{vG}")
        p(f"v_add_u32 v{vT}, s{sT2}, v{eC[nt]}")
        p(f"v_lshlrev_b32 v{eC[nt]}, 4, v{eC[nt]}")
        p(f"v_mul_u32_u24 v{vT2}, 205, v{vT}")
        p(f"v_lshrrev_b32 v{vT2}, 10, v{vT2}")
        p(f"v_mul_u32_u24 v{vT3}, 5, v{vT2}")
        p(f"v_sub_u32 v{vT}, v{vT}, v{vT3}")
        p(f"v_mul_lo_u32 v{vT2}, v{vT2}, s{sHS}")
        p(f"v_lshrrev_b32 v{vT3}, 1, v{vT}")
        p(f"v_lshl_add_u32 v{vT2}, v{vT3}, 9, v{vT2}")
        p(f"v_and_b32 v{vT3}, 1, v{vT}")
        p(f"v_lshl_add_u32 v{vT2}, v{vT3}, 3, v{vT2}")
        p(f"v_lshrrev_b32 v{vT}, 2, v{vT}")
        p(f"v_sub_u32 v{vT}, 4, v{vT}")
        for tt in range(2):
            p(f"v_lshlrev_b32 v{vT3}, v{vT}, v{SUM+tt}")
            p(f"v_add_u32 v{oA[2*nt+tt]}, v{vT2}, v{vT3}")
    mainloop(False)
    AB = [XF[0][0], XF[0][0] + 2]
    CSV = WF[0]
    L = Lgkm(p)
    for tt in range(2):
        L.issue(f"ds_read_b64 v[{AB[tt]}:{AB[tt]+1}], v{eT[tt]} offset:{PA}", [('v', AB[tt]), ('v', AB[tt] + 1)])
    for nt in range(4):
        L.issue(f"ds_read_b128 v[{CSV[nt]}:{CSV[nt]+3}], v{eC[nt]} offset:{PC}", R4(CSV[nt]))
    TMP = WF[1]
    for nt in range(4):
        for tt in range(2):
            L.need(R4(CSV[nt]) + [('v', AB[tt])])
            acc = ACC[tt][nt]
            for r in range(4):
                p(f"v_mul_f32 v{acc+r}, v{AB[tt]}, v{acc+r}")
            for r in range(4):
                p(f"v_fmac_f32 v{acc+r}, v{AB[tt]+1}, v{CSV[nt]+r}")
            o = TMP[nt] + 2 * tt
            p(f"v_cvt_pk_bf16_f32 v{o}, v{acc}, v{acc+1}")
            p(f"v_cvt_pk_bf16_f32 v{o+1}, v{acc+2}, v{acc+3}")
            p(f"buffer_store_dwordx2 v[{o}:{o+1}], v{oA[2*nt+tt]}, s[{RS}:{RS+3}], s{sBASE} offen")
    p("s_branch L_qkv_fin")

    p.label("L_qkv_vpath")
    p(f"s_mul_i32 s{sBASE}, s{sT}, 2560")
    p(f"s_add_u32 s{sBASE}, s{sBASE}, {WS_KV + 1280}")
    p(f"s_mov_b32 s{sSC}, 1.0")
    p(f"s_mov_b32 s{sHS}, 163840")
    p(f"s_sub_u32 s{sT2}, s{sCB}, 10")
    p(f"s_lshl_b32 s{sT2}, s{sT2}, 7")
    p(f"v_and_b32 v{vT}, 1, v{vG}")
    p(f"v_mul_u32_u24 v{SUM}, 320, v{vT}")
    p(f"v_lshrrev_b32 v{vT}, 1, v{vG}")
    p(f"v_lshl_add_u32 v{SUM}, v{vT}, 3, v{SUM}")
    p(f"s_mul_i32 s{sT}, s{sCH}, 640")
    p(f"v_add_u32 v{SUM+1}, s{sT}, v{SUM}")
    p(f"s_sub_u32 s{sT}, 640, s{sT}")
    p(f"v_add_u32 v{SUM+2}, s{sT}, v{SUM}")
    p(f"s_lshl_b32 s{sT}, s{sW}, 7")
    p(f"v_lshl_add_u32 v{eT[0]}, v{vG}, 5, s{sT}")
    p(f"v_xor_b32 v{eT[1]}, 128, v{eT[0]}")
    for nt in range(4):
        p(f"s_xor_b32 s{sT}, s{sT3}, {nt}")
        p(f"v_lshl_add_u32 v{eC[nt]}, s{sT}, 4, v{vR16}")
        p(f"v_add_u32 v{vT}, s{sT2}, v{eC[nt]}")
        p(f"v_lshlrev_b32 v{eC[nt]}, 2, v{eC[nt]}")
        p(f"v_mul_u32_u24 v{vT2}, 3277, v{vT}")
        p(f"v_lshrrev_b32 v{vT2}, 16, v{vT2}")
        p(f"v_mul_u32_u24 v{vT3}, 20, v{vT2}")
        p(f"v_sub_u32 v{vT}, v{vT}, v{vT3}")
        p(f"v_mul_lo_u32 v{vT2}, v{vT2}, s{sHS}")
        p(f"v_lshl_add_u32 v{vT2}, v{vT}, 4, v{vT2}")
        for tt in range(2):
            p(f"v_add_u32 v{oA[2*nt+tt]}, v{vT2}, v{SUM+1+tt}")
    mainloop(True)
    L = Lgkm(p)
    ABV = [[WF[0][0], WF[0][1]], [WF[0][2], WF[0][3]]]
    CV = XF[1][0]
    for tt in range(2):
        for hh in range(2):
            L.issue(f"ds_read_b128 v[{ABV[tt][hh]}:{ABV[tt][hh]+3}], v{eT[tt]} offset:{PA + 16*hh}", R4(ABV[tt][hh]))
    for nt in range(4):
        L.issue(f"ds_read_b32 v{CV+nt}, v{eC[nt]} offset:{PC}", [('v', CV + nt)])
    for nt in range(4):
        for tt in range(2):
            L.need(R4(ABV[tt][0]) + R4(ABV[tt][1]) + [('v', CV + nt)])
            acc = ACC[tt][nt]
            for r in range(4):
                p(f"v_mul_f32 v{acc+r}, v{ABV[tt][r>>1] + 2*(r&1)}, v{acc+r}")
            for r in range(4):
                p(f"v_fmac_f32 v{acc+r}, v{ABV[tt][r>>1] + 2*(r&1) + 1}, v{CV+nt}")
            o = TMP[nt] + 2 * tt
            p(f"v_cvt_pk_bf16_f32 v{o}, v{acc}, v{acc+1}")
            p(f"v_cvt_pk_bf16_f32 v{o+1}, v{acc+2}, v{acc+3}")
            p(f"buffer_store_dwordx2 v[{o}:{o+1}], v{oA[2*nt+tt]}, s[{RS}:{RS+3}], s{sBASE} offen")
    p.label("L_qkv_fin")
    if dbg:
        p("s_waitcnt vmcnt(0)")
        st.stamp(); st.rt()
        st.flush(RS, sW, vT, WS_DBG, sT)
    p.label("L_qkv_end")
    p("s_endpgm")
    p.label("L_qkv_help")
    p(f"s_cmp_ge_u32 s{sRB}, 14")
    p("s_cbranch_scc1 L_qkv_end2")
    p(f"s_load_dwordx2 s[10:11], s[0:1], 32")
    p(f"v_lshrrev_b32 v{vT}, 4, v0")
    p(f"v_mul_u32_u24 v{vT}, 3456, v{vT}")
    p(f"v_and_b32 v{vR16}, 15, v0")
    p(f"v_lshl_add_u32 v{vT}, v{vR16}, 4, v{vT}")
    p(f"s_lshl_b32 s{sT}, s{sRB}, 8")
    p("s_waitcnt lgkmcnt(0)")
    srd(p, RW, 10, D * F * 2)
    srd(p, RS, PWS, WS_END)
    HB = 32
    HA = 16
    for i in range(20):
        p(f"buffer_load_dwordx4 v[{HB+4*i}:{HB+4*i+3}], v{vT}, s[{RW}:{RW+3}], s{sT} offen")
        p(f"s_add_u32 s{sT}, s{sT}, {32*3456}")
    for i in range(8): p(f"v_mov_b32 v{HA+i}, 0")
    for i in range(20):
        p(f"s_waitcnt vmcnt({19-i})")
        for r in range(4):
            p(f"v_lshlrev_b32 v{vT2}, 16, v{HB+4*i+r}")
            p(f"v_and_b32 v{vT3}, 0xffff0000, v{HB+4*i+r}")
            p(f"v_add_f32 v{HA+2*r}, v{HA+2*r}, v{vT2}")
            p(f"v_add_f32 v{HA+2*r+1}, v{HA+2*r+1}, v{vT3}")
    p(f"v_lshlrev_b32 v{vT}, 5, v0")
    p(f"ds_write_b128 v{vT}, v[{HA}:{HA+3}]")
    p(f"ds_write_b128 v{vT}, v[{HA+4}:{HA+7}] offset:16")
    p("s_waitcnt lgkmcnt(0)")
    p("s_barrier")
    p(f"s_cmp_ge_u32 s{sW}, 2")
    p("s_cbranch_scc1 L_qkv_end2")
    p(f"v_lshlrev_b32 v{vT}, 2, v0")
    for half in range(4):
        for i in range(8):
            p(f"ds_read_b32 v{HB+half*8+i}, v{vT} offset:{(half*8+i)*512}")
        p("s_waitcnt lgkmcnt(0)")
    for i in range(1, 32):
        p(f"v_add_f32 v{HB}, v{HB}, v{HB+i}")
    p(f"s_lshl_b32 s{sT}, s{sRB}, 7")
    p(f"v_add_u32 v{vT2}, s{sT}, v0")
    p(f"v_cmp_gt_u32 vcc, {F}, v{vT2}")
    p(f"v_lshlrev_b32 v{vT2}, 2, v{vT2}")
    p(f"s_mov_b32 s{sT}, {WS_CS1}")
    p(f"s_and_saveexec_b64 s[{sEX}:{sEX+1}], vcc")
    p("s_cbranch_execz L_qkv_end2")
    p(f"buffer_store_dword v{HB}, v{vT2}, s[{RS}:{RS+3}], s{sT} offen")
    p.label("L_qkv_end2")
    p("s_endpgm")
    return p
```

```python
import numpy as np
S, D, H, DH, F = 2048, 640, 32, 20, 1728
WS_Q   = 0
WS_KV  = 0x300000
WS_O   = 0x900000
WS_H   = 0xC00000
WS_ST  = 0xF00000
WS_CS1 = 0xF40000
WS_G   = 0x1000000
WS_DBG = 0x1800000
WS_END = 0x1A00000
QSCALE = float(np.log2(np.e) / np.sqrt(20.0))

def frag_index(ntok, K):
    t = np.arange(ntok)[:, None]; k = np.arange(K)[None, :]
    ks = k >> 5; g = (k >> 2) & 3; piece = (k >> 4) & 1
    byte = (t >> 4) * (K // 32 * 1024) + ks * 1024 + (g * 16 + (t & 15)) * 16 + piece * 8 + (k & 3) * 2
    return byte // 2

def qk_index(stride_tile, head_stride):
    t = np.arange(S)[:, None]; c = np.arange(D)[None, :]
    h = c // DH; d = c % DH; dg = d >> 2
    tile = t >> 5; kt = t & 31
    off = np.where(dg < 4, ((dg >> 1) * 32 + kt) * 16 + (dg & 1) * 8, 1024 + kt * 8) + (d & 3) * 2
    return (h * head_stride + tile * stride_tile + off) // 2

def v_index():
    t = np.arange(S)[:, None]; c = np.arange(D)[None, :]
    h = c // DH; d = c % DH
    tile = t >> 5; grp = (t >> 4) & 1; g = (t >> 2) & 3
    off = 1280 + grp * 640 + (g & 1) * 320 + d * 16 + (g >> 1) * 8 + (t & 3) * 2
    return (h * 163840 + tile * 2560 + off) // 2
```

```python
import sys
from asmlib import *
import importlib
HEAD = open('sequential_preLN__mha_block__mixer_channel_mlp__prompt.s.ref').read().split('; Override launch')[0]

def build(kernels, out, verbose=False):
    txt = HEAD
    for name, prog, grid, block, lds in kernels:
        txt += f"; @launch kernel={name} grid=({grid},1,1) block=({block},1,1) lds={lds}\n"
    txt += '.amdgcn_target "amdgcn-amd-amdhsa--gfx950"\n.text\n'
    descs = ''
    done = set()
    for name, prog, grid, block, lds in kernels:
        if name in done: continue
        done.add(name)
        n = prog.fix_hazards(verbose)
        errs = prog.check_waits()
        for e in sorted(errs): print("WAIT-ERROR", name, e, file=sys.stderr)
        body, desc = kernel_text(name, prog)
        print(f"{name}: regs(v,s,a)={prog.max_regs()} nops={n} ninstr={len(prog.ins)}", file=sys.stderr)
        txt += body
        descs += '.p2align 6\n' + desc
    txt += '.section .rodata,"a"\n' + descs
    open(out, 'w').write(txt)

if __name__ == '__main__':
    import os
    from k_attn import gen_attn
    from k_qkv import gen_qkv
    DBG = bool(os.environ.get('DBG'))
    opt = lambda k: eval('dict(' + os.environ.get(k, '') + ')')
    ks = []
    ks.append(("qkv_kernel", gen_qkv(dbg=DBG, **opt('OPT1')), 256, 512, 163840))
    ks.append(("attn_kernel", gen_attn(dbg=DBG, **opt('OPT2')), 256, 512, 163840))
    try:
        from k_gemm import gen_wo, gen_w1, gen_w2
        ks.append(("wo_kernel",) + gen_wo(dbg=DBG, **opt('OPT3')))
        ks.append(("w1_kernel",) + gen_w1(dbg=DBG, **opt('OPT4')))
        ks.append(("w2_kernel",) + gen_w2(dbg=DBG, **opt('OPT5')))
    except ImportError:
        pass
    build(ks, sys.argv[1] if len(sys.argv) > 1 else 'out.s', verbose=bool(os.environ.get('V')))
```
